```python
import torch

def _softmax(x, axis=-1):
    return torch.softmax(x, dim=axis)
def _gelu(x):
    return torch.nn.functional.gelu(x, approximate="tanh")
def _silu(x):
    return torch.nn.functional.silu(x)
def _sigmoid(x):
    return torch.sigmoid(x)
def _layernorm(x, axis=-1, eps=1e-5):
    m = x.mean(dim=axis, keepdim=True)
    v = x.var(dim=axis, keepdim=True, unbiased=False)
    return (x - m) / torch.sqrt(v + eps)
def _scatter_add(tgt, idx, src, axis=0):
    return tgt.clone().index_add_(axis, idx, src)
def _segment_sum(src, seg, n):
    out = torch.zeros((n,) + src.shape[1:], dtype=src.dtype)
    return out.index_add_(0, seg, src)
def _pad(x, pw):
    flat = tuple(v for pair in reversed(pw) for v in pair)
    return torch.nn.functional.pad(x, flat)

kernel_name = 'parallel_sum__mha_block_cached__mixer_channel_mlp__decode'

def setup_inputs():

    _w = (lambda a: (lambda t: t.to(torch.bfloat16) if t.is_floating_point() else t)(torch.as_tensor(a)))
    def _A_setup():
        B, Sq, D = 8, 1, 1024
        H, Sk, Dh = 32, 4096, 128
        return {
            "x": _w((lambda *s: torch.randn(*s, dtype=torch.bfloat16) * 0.05)(B, Sq, D)),
            "k_cache": _w((lambda *s: torch.randn(*s, dtype=torch.bfloat16) * 3.2)(B, H, Sk, Dh)),
            "v_cache": _w((lambda *s: torch.randn(*s, dtype=torch.bfloat16) * 0.4)(B, H, Sk, Dh)),
            "wq": _w((lambda *s: torch.randn(*s, dtype=torch.bfloat16) * 3.2)(D, H * Dh) * (D ** -0.5)),
            "wo": _w((lambda *s: torch.randn(*s, dtype=torch.bfloat16) * 0.4)(H * Dh, D) * ((H * Dh) ** -0.5)),
        }
    _A_in = _A_setup()

    def _B_setup():
        B, S, D, F = 8, 1, 1024, 3584
        return {
            "x": _w((lambda *s: torch.randn(*s, dtype=torch.bfloat16) * 0.05)(B, S, D)),
            "w1": _w((lambda *s: torch.randn(*s, dtype=torch.bfloat16) * 3.2)(D, F) * (D ** -0.5)),
            "b1": _w((lambda *s: torch.randn(*s, dtype=torch.bfloat16) * 1.6)(F)),
            "w2": _w((lambda *s: torch.randn(*s, dtype=torch.bfloat16) * 0.1)(F, D) * (F ** -0.5)),
            "b2": _w((lambda *s: torch.randn(*s, dtype=torch.bfloat16) * 0.1)(D)),
        }
    _B_in = _B_setup()

    return {
        "A_x": _A_in["x"],
        "A_k_cache": _A_in["k_cache"],
        "A_v_cache": _A_in["v_cache"],
        "A_wq": _A_in["wq"],
        "A_wo": _A_in["wo"],
        "B_x": _B_in["x"],
        "B_w1": _B_in["w1"],
        "B_b1": _B_in["b1"],
        "B_w2": _B_in["w2"],
        "B_b2": _B_in["b2"],
    }

def reference(A_x, A_k_cache, A_v_cache, A_wq, A_wo, B_x, B_w1, B_b1, B_w2, B_b2):
    def _A_ref(x, k_cache, v_cache, wq, wo):
        B, Sq, D = x.shape
        H, Dh = 32, 128
        q = (lambda x, *d: x.permute(*d))((x @ wq).reshape(B, Sq, H, Dh), 0, 2, 1, 3)
        scores = torch.einsum("bhqd,bhkd->bhqk", q, k_cache) * (Dh ** -0.5)
        p = _softmax(scores, axis=-1)
        o = torch.einsum("bhqk,bhkd->bhqd", p, v_cache)
        return (lambda x, *d: x.permute(*d))(o, 0, 2, 1, 3).reshape(B, Sq, H * Dh) @ wo

    def _B_ref(x, w1, b1, w2, b2):
        y = _layernorm(x, axis=-1)
        h = _gelu(torch.einsum("bsd,df->bsf", y, w1) + b1)
        return torch.einsum("bsf,fd->bsd", h, w2) + b2

    x = A_x
    xn = _layernorm(x, axis=-1)
    return x + _A_ref(xn, A_k_cache, A_v_cache, A_wq, A_wo) + _B_ref(xn, B_w1, B_b1, B_w2, B_b2)
```

```python
import re

def vr(lo, n=1, p='v'):
    return [f"{p}{i}" for i in range(lo, lo+n)]

def rng(lo, n, p='v'):
    return f"{p}[{lo}:{lo+n-1}]" if n > 1 else f"{p}{lo}"

class Asm:
    def __init__(self):
        self.lines = []
        self.hist = []
        self.vm = []
        self.vmid = 0
        self.done = set()

    def raw(self, text):
        self.lines.append(text)

    def comment(self, t):
        self.lines.append("    ; " + t)

    def _need(self, kind, w, r, rc, dppr):
        need = 0
        dist = 0
        isvalu = kind in ('valu', 'dpp', 'dot', 'trans', 'readlane', 'permlane')
        W, R, RC = set(w), set(r), set(rc)
        for h in reversed(self.hist):
            if dist >= 24:
                break
            hk = h['kind']
            hw, hr, hrc = h['w'], h['r'], h['rc']
            hvalu = hk in ('valu', 'dpp', 'dot', 'trans', 'readlane', 'permlane')
            req = 0
            if hvalu:
                vw = {x for x in hw if x[0] in 'va'}
                sw = {x for x in hw if x[0] == 's' or x in ('vcc', 'exec')}
                if kind == 'dpp' and vw & R: req = max(req, 2)
                if kind == 'permlane' and vw & (R | W): req = max(req, 2)
                if kind == 'mfma' and vw & (R | RC): req = max(req, 2)
                if kind == 'readlane' and vw & R: req = max(req, 1)
                if hk == 'dot':
                    if kind == 'dot':
                        if vw & R: req = max(req, 3)
                    elif vw & (R | W | RC): req = max(req, 3)
                if hk == 'trans' and vw & (R | RC): req = max(req, 1)
                if sw:
                    if isvalu and sw & R: req = max(req, 4 if kind == 'readlane' else 2)
                    if kind in ('vmem', 'vstore') and sw & R: req = max(req, 5)
                    if kind in ('salu', 'branch') and sw & R: req = max(req, 2)
            if hk == 'mfma':
                dw = hw
                if kind == 'mfma':
                    if dw & R: req = max(req, 8)
                    if dw & RC and not (dw == RC): req = max(req, 6)
                elif dw & (R | W): req = max(req, 8)
                if isvalu and hrc & W: req = max(req, 3)
            if hk == 'vstore':
                if hr & W and (isvalu or kind in ('vmem', 'ds')): req = max(req, 2)
            if req > dist:
                need = max(need, req - dist)
            dist += h['states']
        return need

    def nop(self, n):
        while n > 0:
            k = min(n, 16)
            self.lines.append(f"    s_nop {k-1}")
            self.hist.append(dict(kind='nop', w=set(), r=set(), rc=set(), states=k))
            n -= k

    def emit(self, text, kind, w=(), r=(), rc=(), dppr=()):
        n = self._need(kind, w, r, rc, dppr)
        if n:
            self.nop(n)
        self.lines.append("    " + text)
        self.hist.append(dict(kind=kind, w=set(w), r=set(r), rc=set(rc), states=1))
        if len(self.hist) > 64:
            self.hist = self.hist[-40:]

    def label(self, name):
        self.lines.append(f"{name}:")
        self.nop(8)

    def vm_issue(self):
        self.vmid += 1
        self.vm.append(self.vmid)
        assert len(self.vm) <= 63, "vmcnt overflow"
        return self.vmid

    def wait_vm(self, i):
        if i not in self.vm:
            return
        idx = self.vm.index(i)
        n = len([x for x in self.vm[idx+1:] if x < 1000000])
        self.emit(f"s_waitcnt vmcnt({n})", 'salu')
        self.vm = self.vm[idx+1:]

    def wait_vm_all(self):
        self.emit("s_waitcnt vmcnt(0)", 'salu')
        self.vm = []

    def wait_lgkm(self):
        self.emit("s_waitcnt lgkmcnt(0)", 'salu')

    @staticmethod
    def _regs(op):
        op = op.strip()
        if op.startswith('-'): op = op[1:]
        m = re.fullmatch(r"([vas])\[(\d+):(\d+)\]", op)
        if m:
            return [f"{m.group(1)}{i}" for i in range(int(m.group(2)), int(m.group(3))+1)]
        if re.fullmatch(r"[vas]\d+", op):
            return [op]
        if op in ('vcc', 'exec'):
            return [op]
        return []

    def v(self, opc, dst, *srcs, kind='valu', mods='', rmw=False):
        w = self._regs(dst)
        r = []
        for s in srcs: r += self._regs(s)
        if rmw: r += w
        self.emit(f"{opc} {dst}, {', '.join(srcs)}{(' ' + mods) if mods else ''}", kind, w=w, r=r)

    def dpp(self, opc, dst, *srcs, ctrl, bank=0xf):
        w = self._regs(dst)
        r = []
        for s in srcs: r += self._regs(s)
        if bank != 0xf: r += w
        self.emit(f"{opc}_dpp {dst}, {', '.join(srcs)} {ctrl} row_mask:0xf bank_mask:{bank:#x}", 'dpp', w=w, r=r)

    def trans(self, opc, dst, src):
        self.v(opc, dst, src, kind='trans')

    def dot(self, dst, a, b, c):
        self.emit(f"v_dot2_f32_bf16 {dst}, {a}, {b}, {c}", 'dot', w=self._regs(dst), r=self._regs(a)+self._regs(b), rc=self._regs(c))

    def mfma(self, d, a, b, c):
        self.emit(f"v_mfma_f32_16x16x32_bf16 {d}, {a}, {b}, {c}", 'mfma', w=self._regs(d), r=self._regs(a)+self._regs(b), rc=self._regs(c))

    def s(self, opc, dst, *srcs):
        w = self._regs(dst)
        r = []
        for x in srcs: r += self._regs(x)
        self.emit(f"{opc} {dst}{''.join(', ' + x for x in srcs)}", 'salu', w=w, r=r)

    def readlane(self, sdst, vsrc, lane):
        self.emit(f"v_readlane_b32 {sdst}, {vsrc}, {lane}", 'readlane', w=[sdst], r=[vsrc])

    def readfirst(self, sdst, vsrc):
        self.emit(f"v_readfirstlane_b32 {sdst}, {vsrc}", 'readlane', w=[sdst], r=[vsrc])

    def bload(self, opc, dst, voff, srd, soff, off=0, pol=''):
        t = f"{opc} {dst}, {voff}, {srd}, {soff} offen"
        if off: t += f" offset:{off}"
        if pol: t += " " + pol
        self.emit(t, 'vmem', w=self._regs(dst), r=self._regs(voff)+self._regs(srd)+self._regs(soff))
        return self.vm_issue()

    def bstore(self, opc, src, voff, srd, soff, off=0, pol=''):
        t = f"{opc} {src}, {voff}, {srd}, {soff} offen"
        if off: t += f" offset:{off}"
        if pol: t += " " + pol
        self.emit(t, 'vstore', w=(), r=self._regs(src)+self._regs(voff)+self._regs(srd)+self._regs(soff))
        return self.vm_issue()

    def dsr(self, opc, dst, addr, off=0):
        t = f"{opc} {dst}, {addr}" + (f" offset:{off}" if off else "")
        self.emit(t, 'ds', w=self._regs(dst), r=self._regs(addr))

    def dsw(self, opc, addr, src, off=0):
        t = f"{opc} {addr}, {src}" + (f" offset:{off}" if off else "")
        self.emit(t, 'ds', w=(), r=self._regs(addr)+self._regs(src))

    def text(self):
        return "\n".join(self.lines) + "\n"
```

```python
import sys
from asmlib import Asm, rng
NAME = "parallel_sum__mha_block_cached__mixer_channel_mlp__decode"

def f2u(x):
    import struct
    return "0x%08x" % struct.unpack("<I", struct.pack("<f", x))[0]

def bitrev4(t):
    return ((t & 1) << 3) | ((t & 2) << 1) | ((t & 4) >> 1) | ((t & 8) >> 3)

def gen(D=20, POL_KV="nt", POL_W="", header=None):
    a = Asm()
    NW = 8
    vTID, vL, vJ, vG = "v0", "v1", "v2", "v3"
    vKV, vWQ, vW1, vW2 = "v4", "v5", "v6", "v7"
    M = [f"v{8+i}" for i in range(4)]
    AS = [12, 16]
    ACC = 20
    Q = 24
    S = 28
    X2 = 36
    Y2 = 38
    B1 = 40
    T = 42
    RING = 48
    assert RING + 4*D <= 128
    sWV, sB, sH = "s3", "s30", "s31"
    SK, SV, SWQ, SW1, SW2, SWO, SX, SB1, SWS = [32 + 4*i for i in range(9)]
    srd = lambda b: f"s[{b}:{b+3}]"
    SOFF = "s68"
    SC, SA = "s[80:81]", "s[82:83]"
    RL = [84, 85, 86, 87]
    L_QP, L_HP, L_OP, L_QB, L_SM, L_FLAG, L_FIN = 0, 4096, 8192, 12288, 14336, 14464, 16384
    LDS_BYTES = 20480

    a.raw(header)
    a.raw(f"; @launch grid=(256,1,1) block=(512,1,1) lds={LDS_BYTES}")
    a.raw('.amdgcn_target "amdgcn-amd-amdhsa--gfx950"')
    a.raw(".text")
    a.raw(f".globl {NAME}_kernel")
    a.raw(".p2align 8")
    a.raw(f".type {NAME}_kernel,@function")
    a.raw(f"{NAME}_kernel:")
    a.s("s_cmp_ge_u32", "s2", "256")
    a.emit("s_cbranch_scc1 L_end", 'branch')
    a.emit("s_load_dwordx16 s[4:19], s[0:1], 0", 'salu')
    a.emit("s_load_dwordx8 s[20:27], s[0:1], 64", 'salu')
    a.emit("s_load_dwordx2 s[28:29], s[0:1], 96", 'salu')
    a.v("v_and_b32", vL, "63", "v0")
    a.v("v_lshrrev_b32", f"v{T}", "6", "v0")
    a.v("v_and_b32", vJ, "15", "v0")
    a.v("v_bfe_u32", vG, "v0", "4", "2")
    a.readfirst(sWV, f"v{T}")
    a.s("s_lshr_b32", sB, "s2", "5")
    a.s("s_and_b32", sH, "s2", "31")
    a.v("v_lshlrev_b32", vKV, "4", vL)
    a.v("v_lshl_add_u32", vKV, f"v{T}", "12", vKV)
    a.v("v_lshl_add_u32", f"v{T+1}", f"v{T}", "7", vG)
    a.v("v_lshlrev_b32", f"v{T+2}", "4", vJ)
    a.s("s_lshl_b32", "s69", sH, "8")
    a.v("v_lshl_add_u32", vWQ, f"v{T+1}", "13", f"v{T+2}")
    a.v("v_add_u32", vWQ, "s69", vWQ)
    a.s("s_mul_i32", "s70", sH, "224")
    a.s("s_movk_i32", "s71", "7168")
    a.v("v_mad_u32_u24", vW1, f"v{T+1}", "s71", f"v{T+2}")
    a.v("v_add_u32", vW1, "s70", vW1)
    a.v("v_cmp_gt_u32", "vcc", "14", vJ)
    a.v("v_mov_b32", f"v{T+3}", "0x40000000")
    a.v("v_cndmask_b32", vW1, f"v{T+3}", vW1, "vcc")
    a.v("v_lshl_add_u32", vW2, vG, "11", f"v{T+2}")
    a.v("v_lshl_add_u32", vW2, f"v{T}", "8", vW2)
    a.v("v_lshl_add_u32", f"v{T+3}", vJ, "2", vG)
    a.v("v_lshlrev_b32", f"v{T+3}", "1", f"v{T+3}")
    a.v("v_lshl_add_u32", f"v{T+4}", f"v{T}", "8", f"v{T+3}")
    a.v("v_lshlrev_b32", f"v{T+5}", "5", vL)
    a.wait_lgkm()
    def mksrd(b, plo, off, nrec):
        if off is None:
            a.s("s_mov_b32", f"s{b}", f"s{plo}")
            a.s("s_mov_b32", f"s{b+1}", f"s{plo+1}")
        else:
            a.s("s_add_u32", f"s{b}", f"s{plo}", off)
            a.s("s_addc_u32", f"s{b+1}", f"s{plo+1}", "0")
        a.s("s_mov_b32", f"s{b+2}", str(nrec))
        a.s("s_mov_b32", f"s{b+3}", "0x00020000")
    a.s("s_lshl_b32", "s72", sB, "11")
    mksrd(SX, 4, "s72", 2048)
    mksrd(SWQ, 10, None, 8388608)
    id_x0 = a.bload("buffer_load_dwordx4", rng(S, 4), f"v{T+5}", srd(SX), "0")
    id_x1 = a.bload("buffer_load_dwordx4", rng(S+4, 4), f"v{T+5}", srd(SX), "0", off=16)
    id_xo0 = a.bload("buffer_load_ushort", f"v{X2}", f"v{T+4}", srd(SX), "0")
    id_xo1 = a.bload("buffer_load_ushort", f"v{X2+1}", f"v{T+4}", srd(SX), "0", off=128)
    id_wq = []
    for u in range(32):
        a.s("s_mov_b32", SOFF, str(u*32768))
        id_wq.append(a.bload("buffer_load_dwordx4", rng(4*u, 4, 'a'), vWQ, srd(SWQ), SOFF, pol=POL_W))
    a.s("s_lshl_b32", "s72", "s2", "20")
    mksrd(SK, 6, "s72", 1048576)
    mksrd(SV, 8, "s72", 1048576)
    ids = {}
    def issue_stream(n):
        if n >= 256: return
        sr = SK if n < 128 else SV
        m = n % 128
        c, t = m >> 2, m & 3
        r = RING + 4*(n % D)
        a.s("s_mov_b32", SOFF, str(c*32768))
        ids[n] = a.bload("buffer_load_dwordx4", rng(r, 4), vKV, srd(sr), SOFF, off=t*1024, pol=POL_KV)
    for n in range(D):
        issue_stream(n)
    mksrd(SW1, 16, None, 7340032)
    a.s("s_mul_i32", "s72", sH, "229376")
    mksrd(SW2, 20, "s72", 229376)
    a.s("s_lshl_b32", "s72", sH, "18")
    mksrd(SWO, 12, "s72", 262144)
    mksrd(SB1, 18, "s70", 224)
    mksrd(SWS, 28, None, 2097152)
    id_b10 = a.bload("buffer_load_ushort", f"v{B1}", f"v{T+3}", srd(SB1), "0")
    id_b11 = a.bload("buffer_load_ushort", f"v{B1+1}", f"v{T+3}", srd(SB1), "0", off=128)
    a.v("v_and_b32", f"v{T}", "1", vJ)
    a.v("v_lshlrev_b32", f"v{T}", "4", f"v{T}")
    a.v("v_mov_b32", f"v{T+1}", "0xffff")
    a.v("v_lshlrev_b32", f"v{T+1}", f"v{T}", f"v{T+1}")
    a.v("v_lshrrev_b32", f"v{T+2}", "1", vJ)
    for w in range(4):
        a.v("v_cmp_eq_u32", "vcc", str(w), f"v{T+2}")
        a.v("v_cndmask_b32", M[w], "0", f"v{T+1}", "vcc")
    a.s("s_mov_b32", "s80", "0xcccccccc"); a.s("s_mov_b32", "s81", "0xcccccccc")
    a.s("s_mov_b32", "s82", "0xaaaaaaaa"); a.s("s_mov_b32", "s83", "0xaaaaaaaa")

    def allreduce(op, r):
        for n in (8, 4, 2, 1):
            a.dpp(op, r, r, r, ctrl=f"row_ror:{n}")
        for i in range(4):
            a.readlane(f"s{RL[i]}", r, str(16*i))
        a.v("v_mov_b32", r, f"s{RL[0]}")
        for i in range(1, 4):
            a.v(op, r, f"s{RL[i]}", r)

    def bfr(dst, src):
        a.v("v_cvt_pk_bf16_f32", dst, "0", src)

    t0, t1, t2, t3 = "v12", "v13", "v14", "v15"
    vSUM, vMB, vSD, vRI = "v16", "v17", "v18", "v19"
    def ln_stats():
        a.v("v_mov_b32", vSUM, "0")
        for i in range(8):
            a.v("v_lshlrev_b32", t0, "16", f"v{S+i}")
            a.v("v_and_b32", t1, "0xffff0000", f"v{S+i}")
            a.v("v_add_f32", vSUM, vSUM, t0)
            a.v("v_add_f32", vSUM, vSUM, t1)
        allreduce("v_add_f32", vSUM)
        a.v("v_mul_f32", vMB, f2u(1.0/1024), vSUM)
        a.v("v_mov_b32", vSUM, "0")
        for i in range(8):
            a.v("v_lshlrev_b32", t0, "16", f"v{S+i}")
            a.v("v_and_b32", t1, "0xffff0000", f"v{S+i}")
            a.v("v_sub_f32", t0, t0, vMB)
            a.v("v_sub_f32", t1, t1, vMB)
            a.v("v_fmac_f32", vSUM, t0, t0, rmw=True)
            a.v("v_fmac_f32", vSUM, t1, t1, rmw=True)
        allreduce("v_add_f32", vSUM)
        a.v("v_mul_f32", vSUM, f2u(1.0/1024), vSUM)
        bfr(vMB, vMB)
        bfr(vSUM, vSUM)
        a.v("v_add_f32", vSUM, f2u(1e-5), vSUM)
        bfr(vSUM, vSUM)
        a.trans("v_sqrt_f32", vSD, vSUM)
        bfr(vSD, vSD)
        a.trans("v_rcp_f32", vRI, vSD)
    def ln_apply(x, tmp):
        a.v("v_sub_f32", x, x, vMB)
        bfr(x, x)
        a.v("v_mul_f32", tmp, x, vRI)
        a.v("v_fma_f32", x, f"-{tmp}", vSD, x)
        a.v("v_fma_f32", x, x, vRI, tmp)

    a.wait_vm(id_xo1)
    ln_stats()
    for i in range(2):
        a.v("v_lshlrev_b32", f"v{X2+i}", "16", f"v{X2+i}")
        ln_apply(f"v{X2+i}", t0)
        a.v("v_cvt_pk_bf16_f32", f"v{X2+i}", f"v{X2+i}", f"v{X2+i}")
    for i in range(8):
        a.v("v_lshlrev_b32", t0, "16", f"v{S+i}")
        a.v("v_and_b32", t1, "0xffff0000", f"v{S+i}")
        ln_apply(t0, t2)
        ln_apply(t1, t3)
        a.v("v_cvt_pk_bf16_f32", f"v{S+i}", t0, t1)
    ln_stats()
    for i in range(2):
        a.v("v_and_b32", f"v{Y2+i}", "0xffff0000", f"v{X2+i}")
        ln_apply(f"v{Y2+i}", t0)
        a.v("v_cvt_pk_bf16_f32", f"v{Y2+i}", f"v{Y2+i}", f"v{Y2+i}")

    cnt = [0]
    def diag_mfma(src2, lane, btile, first):
        As = AS[cnt[0] & 1]; cnt[0] += 1
        for w in range(4):
            a.dpp("v_and_b32", f"v{As+w}", src2, M[w], ctrl=f"row_newbcast:{lane}")
        a.mfma(rng(ACC, 4), rng(As, 4), btile, "0" if first else rng(ACC, 4))

    def lo32(on):
        if on:
            a.emit("s_mov_b32 exec_hi, 0", 'salu', w=['exec'])
        else:
            a.emit("s_mov_b32 exec_hi, -1", 'salu', w=['exec'])

    def write_partial(lbase):
        ad = f"v{T}"
        a.v("v_and_b32", ad, "1", vG)
        a.v("v_lshlrev_b32", ad, "7", ad)
        a.v("v_lshl_add_u32", ad, vJ, "8", ad)
        a.s("s_lshl_b32", "s72", sWV, "2")
        a.v("v_add_u32", ad, "s72", ad)
        lo32(True)
        for r in range(4):
            a.dsw("ds_write_b32", ad, f"v{ACC+r}", off=lbase + r*32)
        lo32(False)

    def sum8(dst, base):
        a.v("v_add_f32", f"v{base}", f"v{base}", f"v{base+1}")
        a.v("v_add_f32", f"v{base+2}", f"v{base+2}", f"v{base+3}")
        a.v("v_add_f32", f"v{base+4}", f"v{base+4}", f"v{base+5}")
        a.v("v_add_f32", f"v{base+6}", f"v{base+6}", f"v{base+7}")
        a.v("v_add_f32", f"v{base}", f"v{base}", f"v{base+2}")
        a.v("v_add_f32", f"v{base+4}", f"v{base+4}", f"v{base+6}")
        a.v("v_add_f32", dst, f"v{base}", f"v{base+4}")

    id_w1 = []
    for u in range(32):
        a.wait_vm(id_wq[u])
        diag_mfma(f"v{X2 + (u >> 4)}", u & 15, rng(4*u, 4, 'a'), u == 0)
        a.s("s_mov_b32", SOFF, str(u*28672))
        id_w1.append(a.bload("buffer_load_dwordx4", rng(4*u, 4, 'a'), vW1, srd(SW1), SOFF, pol=POL_W))
    write_partial(L_QP)
    a.wait_lgkm()
    a.emit("s_barrier", 'salu')
    ad = f"v{T}"
    a.v("v_lshlrev_b32", ad, "6", vL)
    for i in range(4):
        a.dsr("ds_read_b128", rng(12 + 4*i, 4), ad, off=L_QP + 16*i)
    a.wait_lgkm()
    sum8(f"v{T+1}", 12)
    sum8(f"v{T+2}", 20)
    a.v("v_cvt_pk_bf16_f32", f"v{T+1}", f"v{T+1}", f"v{T+2}")
    a.s("s_lshl_b32", "s72", sWV, "8")
    a.v("v_lshlrev_b32", ad, "2", vL)
    a.v("v_add_u32", ad, "s72", ad)
    a.dsw("ds_write_b32", ad, f"v{T+1}", off=L_QB)
    a.v("v_lshlrev_b32", ad, "4", vJ)
    a.v("v_add_u32", ad, "s72", ad)
    a.wait_lgkm()
    a.dsr("ds_read_b128", rng(Q, 4), ad, off=L_QB)
    a.wait_lgkm()

    PA, PB = "v12", "v13"
    L1, L2, L3 = "v14", "v15", "v16"
    id_w2 = [None]*28
    for n in range(128):
        G, t = n >> 4, n & 15
        if n == D:
            pass
        a.wait_vm(ids[n])
        r = RING + 4*(n % D)
        P = PA if (t & 1) == 0 else PB
        for i in range(4):
            a.dot(P, f"v{r+i}", f"v{Q+i}", "0" if i == 0 else P)
        issue_stream(n + D)
        if t & 1:
            dst1 = L1 if (t & 2) == 0 else PA
            a.dpp("v_add_f32", dst1, PA, PA, ctrl="row_ror:8", bank=0x3)
            a.dpp("v_add_f32", dst1, PB, PB, ctrl="row_ror:8", bank=0xc)
            if t & 2:
                dst2 = L2 if (t & 4) == 0 else L1
                a.dpp("v_add_f32", dst2, L1, L1, ctrl="row_ror:12", bank=0x5)
                a.dpp("v_add_f32", dst2, PA, PA, ctrl="row_ror:4", bank=0xa)
                if t & 4:
                    dst3 = L3 if (t & 8) == 0 else L2
                    a.dpp("v_add_f32", PA, L2, L2, ctrl="quad_perm:[2,3,0,1]")
                    a.dpp("v_add_f32", PB, L1, L1, ctrl="quad_perm:[2,3,0,1]")
                    a.v("v_cndmask_b32", dst3, PA, PB, SC)
                    if t & 8:
                        a.dpp("v_add_f32", PA, L3, L3, ctrl="quad_perm:[1,0,3,2]")
                        a.dpp("v_add_f32", PB, L2, L2, ctrl="quad_perm:[1,0,3,2]")
                        sg = f"v{S+G}"
                        a.v("v_cndmask_b32", sg, PA, PB, SA)
                        bfr(sg, sg)
                        a.v("v_mul_f32", sg, f2u(128 ** -0.5), sg)
                        bfr(sg, sg)
        if n == 31:
            for u in range(32):
                a.wait_vm(id_w1[u])
                diag_mfma(f"v{Y2 + (u >> 4)}", u & 15, rng(4*u, 4, 'a'), u == 0)
            write_partial(L_HP)
        if n >= 33 and (n - 33) % 2 == 0 and (n - 33)//2 < 28:
            u = (n - 33)//2
            a.s("s_mov_b32", SOFF, str(u*8192))
            id_w2[u] = a.bload("buffer_load_dwordx4", rng(4*u, 4, 'a'), vW2, srd(SW2), SOFF, pol=POL_W)

    vM, vE, vSm = "v12", "v13", "v14"
    a.v("v_max3_f32", vM, f"v{S}", f"v{S+1}", f"v{S+2}")
    a.v("v_max3_f32", vM, vM, f"v{S+3}", f"v{S+4}")
    a.v("v_max3_f32", vM, vM, f"v{S+5}", f"v{S+6}")
    a.v("v_max_f32", vM, vM, f"v{S+7}")
    allreduce("v_max_f32", vM)
    LOG2E = f2u(1.4426950408889634)
    a.v("v_mov_b32", "v13", "0")
    for i in range(8):
        a.v("v_sub_f32", "v14", f"v{S+i}", vM)
        a.v("v_mul_f32", "v14", LOG2E, "v14")
        a.trans("v_exp_f32", "v14", "v14")
        a.v("v_add_f32", "v13", "v13", "v14")
    allreduce("v_add_f32", "v13")
    ad = f"v{T}"
    a.s("s_lshl_b32", "s72", sWV, "3")
    a.v("v_mov_b32", ad, "s72")
    a.dsw("ds_write_b64", ad, "v[12:13]", off=L_SM)
    a.wait_lgkm()
    a.emit("s_barrier", 'salu')
    a.v("v_mov_b32", ad, "0")
    for i in range(4):
        a.dsr("ds_read_b128", rng(12 + 4*i, 4), ad, off=L_SM + 16*i)
    ah = f"v{T+1}"
    a.v("v_lshl_add_u32", ah, vJ, "2", vG)
    a.v("v_lshlrev_b32", ah, "5", ah)
    a.wait_lgkm()
    gM, gT, tt = f"v{T+2}", f"v{T+3}", f"v{T+4}"
    a.v("v_max3_f32", gM, "v12", "v14", "v16")
    a.v("v_max3_f32", gM, gM, "v18", "v20")
    a.v("v_max3_f32", gM, gM, "v22", "v24")
    a.v("v_max_f32", gM, gM, "v26")
    a.v("v_mov_b32", gT, "0")
    for w in range(8):
        a.v("v_sub_f32", tt, f"v{12+2*w}", gM)
        a.v("v_mul_f32", tt, LOG2E, tt)
        a.trans("v_exp_f32", tt, tt)
        a.v("v_fmac_f32", gT, tt, f"v{13+2*w}", rmw=True)
    for grp in range(2):
        for i in range(2):
            a.dsr("ds_read_b128", rng(12 + 8*grp + 4*i, 4), ah, off=L_HP + grp*2048 + 16*i)
    inv = f"v{T+5}"
    a.trans("v_rcp_f32", inv, gT)
    a.v("v_fma_f32", tt, f"-{gT}", inv, "1.0")
    a.v("v_fma_f32", inv, tt, inv, inv)
    for i in range(8):
        sg = f"v{S+i}"
        a.v("v_sub_f32", sg, sg, gM)
        a.v("v_mul_f32", sg, LOG2E, sg)
        a.trans("v_exp_f32", sg, sg)
        a.v("v_mul_f32", sg, sg, inv)
        a.v("v_cvt_pk_bf16_f32", sg, sg, sg)
    a.wait_lgkm()
    a.wait_vm(id_b11)
    for grp in range(2):
        hx = f"v{X2+grp}"
        sum8(hx, 12 + 8*grp)
        bfr(hx, hx)
        a.v("v_lshlrev_b32", tt, "16", f"v{B1+grp}")
        a.v("v_add_f32", hx, hx, tt)
        bfr(hx, hx)
        u_ = gM
        a.v("v_mul_f32", u_, hx, hx)
        a.v("v_mul_f32", u_, u_, hx)
        a.v("v_mul_f32", u_, f2u(0.044715), u_)
        a.v("v_add_f32", u_, u_, hx)
        a.v("v_mul_f32", u_, f2u(0.7978845608028654), u_)
        a.v("v_mul_f32", u_, f2u(2*1.4426950408889634), u_)
        a.trans("v_exp_f32", u_, u_)
        a.v("v_add_f32", u_, "1.0", u_)
        a.trans("v_rcp_f32", u_, u_)
        a.v("v_fma_f32", u_, u_, "-2.0", "2.0")
        a.v("v_mul_f32", tt, "0.5", hx)
        a.v("v_mul_f32", hx, tt, u_)
        a.v("v_cvt_pk_bf16_f32", hx, hx, hx)
    for u in range(28):
        a.wait_vm(id_w2[u])
        diag_mfma(f"v{X2 + (u >> 4)}", u & 15, rng(4*u, 4, 'a'), u == 0)
    vST = f"v{Y2}"
    a.v("v_and_b32", vST, "1", vG)
    a.v("v_lshlrev_b32", vST, "4", vST)
    a.v("v_lshl_add_u32", vST, vJ, "5", vST)
    a.s("s_lshl_b32", "s72", sWV, "9")
    a.v("v_add_u32", vST, "s72", vST)
    a.s("s_lshl_b32", "s73", "s2", "12")
    a.s("s_add_u32", "s74", "s73", "0x100000")
    lo32(True)
    a.bstore("buffer_store_dwordx4", rng(ACC, 4), vST, srd(SWS), "s74", pol="sc1")
    lo32(False)

    id_wo = [None]*32
    for m in range(128):
        n = 128 + m
        G, t = m >> 4, m & 15
        a.wait_vm(ids[n])
        r = RING + 4*(n % D)
        diag_mfma(f"v{S+G}", bitrev4(t), rng(r, 4), m == 0)
        issue_stream(n + D)
        if m >= 2 and (m - 2) % 2 == 0 and (m - 2)//2 < 32:
            u = (m - 2)//2
            a.s("s_mov_b32", SOFF, str(u*8192))
            id_wo[u] = a.bload("buffer_load_dwordx4", rng(4*u, 4, 'a'), vW2, srd(SWO), SOFF, pol=POL_W)
    write_partial(L_OP)
    a.wait_lgkm()
    a.emit("s_barrier", 'salu')
    for grp in range(2):
        for i in range(2):
            a.dsr("ds_read_b128", rng(12 + 8*grp + 4*i, 4), ah, off=L_OP + grp*2048 + 16*i)
    a.wait_lgkm()
    for grp in range(2):
        ox = f"v{X2+grp}"
        sum8(ox, 12 + 8*grp)
        a.v("v_cvt_pk_bf16_f32", ox, ox, ox)
    for u in range(32):
        a.wait_vm(id_wo[u])
        diag_mfma(f"v{X2 + (u >> 4)}", u & 15, rng(4*u, 4, 'a'), u == 0)
    lo32(True)
    a.bstore("buffer_store_dwordx4", rng(ACC, 4), vST, srd(SWS), "s73", pol="sc1")
    lo32(False)
    a.wait_vm_all()
    a.emit("s_barrier", 'salu')
    a.s("s_cmp_lg_u32", sWV, "0")
    a.emit("s_cbranch_scc1 L_skip_atomic", 'branch')
    a.s("s_mov_b64", "exec", "1")
    a.s("s_lshl_b32", "s72", sB, "2")
    a.v("v_mov_b32", "v12", "s72")
    a.v("v_mov_b32", "v13", "1")
    a.emit("global_atomic_add v14, v12, v13, s[26:27] sc0 sc1", 'vmem', w=["v14"], r=["v12", "v13", "s26", "s27"])
    a.emit("s_waitcnt vmcnt(0)", 'salu')
    a.v("v_mov_b32", "v12", "0")
    a.dsw("ds_write_b32", "v12", "v14", off=L_FLAG)
    a.wait_lgkm()
    a.s("s_mov_b64", "exec", "-1")
    a.label("L_skip_atomic")
    a.emit("s_barrier", 'salu')
    a.v("v_mov_b32", "v12", "0")
    a.dsr("ds_read_b32", "v13", "v12", off=L_FLAG)
    a.wait_lgkm()
    a.readfirst("s72", "v13")
    a.s("s_cmp_lg_u32", "s72", "31")
    a.emit("s_cbranch_scc1 L_end", 'branch')
    vO = "v12"
    a.v("v_and_b32", "v13", "255", "v0")
    a.v("v_lshrrev_b32", "v14", "8", "v0")
    a.v("v_lshlrev_b32", vO, "4", "v13")
    a.v("v_lshl_add_u32", vO, "v14", "20", vO)
    a.s("s_lshl_b32", "s72", sB, "17")
    fid = []
    for hh in range(32):
        a.s("s_add_u32", SOFF, "s72", str(hh*4096))
        dst = rng(RING + 4*hh, 4) if hh < 20 else rng(4*(hh-20), 4, 'a')
        fid.append(a.bload("buffer_load_dwordx4", dst, vO, srd(SWS), SOFF, pol="sc1"))
    a.v("v_lshlrev_b32", "v15", "3", "v13")
    mksrd(SB1, 22, None, 2048)
    idx_ = a.bload("buffer_load_dwordx2", "v[16:17]", "v15", srd(SX), "0")
    idb_ = a.bload("buffer_load_dwordx2", "v[18:19]", "v15", srd(SB1), "0")
    for hh in range(32):
        a.wait_vm(fid[hh])
        for r in range(4):
            if hh < 20:
                src = f"v{RING + 4*hh + r}"
            else:
                a.v("v_accvgpr_read_b32", f"v{24+r}", f"a{4*(hh-20)+r}")
                src = f"v{24+r}"
            if hh == 0:
                a.v("v_mov_b32", f"v{ACC+r}", src)
            else:
                a.v("v_add_f32", f"v{ACC+r}", f"v{ACC+r}", src)
    a.wait_vm(idb_)
    a.v("v_lshlrev_b32", "v14", "4", "v13")
    a.s("s_cmp_lt_u32", sWV, "4")
    a.emit("s_cbranch_scc1 L_fin_a", 'branch')
    a.dsw("ds_write_b128", "v14", rng(ACC, 4), off=L_FIN)
    a.wait_lgkm()
    a.label("L_fin_a")
    a.emit("s_barrier", 'salu')
    a.s("s_cmp_ge_u32", sWV, "4")
    a.emit("s_cbranch_scc1 L_end", 'branch')
    a.dsr("ds_read_b128", "v[24:27]", "v14", off=L_FIN)
    a.wait_lgkm()
    for r in range(4):
        xs = f"v{16 + (r >> 1)}"; bs = f"v{18 + (r >> 1)}"
        if r & 1:
            a.v("v_and_b32", "v28", "0xffff0000", xs)
            a.v("v_and_b32", "v29", "0xffff0000", bs)
        else:
            a.v("v_lshlrev_b32", "v28", "16", xs)
            a.v("v_lshlrev_b32", "v29", "16", bs)
        A_, M_ = f"v{ACC+r}", f"v{24+r}"
        bfr(A_, A_)
        bfr(M_, M_)
        a.v("v_add_f32", M_, M_, "v29")
        bfr(M_, M_)
        a.v("v_add_f32", A_, "v28", A_)
        bfr(A_, A_)
        a.v("v_add_f32", A_, A_, M_)
    a.v("v_cvt_pk_bf16_f32", "v30", f"v{ACC}", f"v{ACC+1}")
    a.v("v_cvt_pk_bf16_f32", "v31", f"v{ACC+2}", f"v{ACC+3}")
    a.s("s_lshl_b32", "s72", sB, "11")
    mksrd(SB1, 24, "s72", 2048)
    a.bstore("buffer_store_dwordx2", "v[30:31]", "v15", srd(SB1), "0")
    a.raw("L_end:")
    a.raw("    s_endpgm")
    a.raw('.section .rodata,"a"')
    a.raw(".p2align 6")
    a.raw(f".amdhsa_kernel {NAME}_kernel")
    a.raw("  .amdhsa_next_free_vgpr 256")
    a.raw("  .amdhsa_next_free_sgpr 96")
    a.raw("  .amdhsa_accum_offset 128")
    a.raw("  .amdhsa_group_segment_fixed_size 0")
    a.raw("  .amdhsa_kernarg_size 104")
    a.raw("  .amdhsa_user_sgpr_count 2")
    a.raw("  .amdhsa_user_sgpr_kernarg_segment_ptr 1")
    a.raw("  .amdhsa_system_sgpr_workgroup_id_x 1")
    a.raw(".end_amdhsa_kernel")
    return a.text()

if __name__ == "__main__":
    ref = open(f"cdna_kernels/{NAME}.s.ref").read().splitlines()
    hdr = "\n".join(l for l in ref if l.startswith(";") and "@launch" not in l and "Override launch" not in l and "grid=ceil" not in l)
    out = sys.argv[1] if len(sys.argv) > 1 else f"cdna_kernels/{NAME}.s"
    open(out, "w").write(gen(header=hdr))
    print("wrote", out)
```

```python
import sys
from asmlib import Asm, rng
NAME = "parallel_sum__mha_block_cached__mixer_channel_mlp__decode"

def f2u(x):
    import struct
    return "0x%08x" % struct.unpack("<I", struct.pack("<f", x))[0]

def bitrev4(t):
    return ((t & 1) << 3) | ((t & 2) << 1) | ((t & 4) >> 1) | ((t & 8) >> 3)

def header():
    ref = open(f"cdna_kernels/{NAME}.s.ref").read().splitlines()
    return "\n".join(l for l in ref if l.startswith(";") and "@launch" not in l and "Override launch" not in l and "grid=ceil" not in l)

def gen(W=16, W0=24, RATIO=2, POL_KV="nt", POL_W="", STAMP=False, W1_START=44, CATCH=3, SKIP=(), HMAP=0, FAKE=(), XS=2, LAG=22, DBGT=False, HELP=4, SLEEP=8, PF=(), BOOST=0, ROT=None, NL=36):
    a = Asm()
    NW = 4
    stamps = [0]
    def stamp():
        if not STAMP: return
        i = stamps[0]; stamps[0] += 1
        a.emit("s_memrealtime s[88:89]", "salu")
        a.wait_lgkm()
        a.emit(f"v_writelane_b32 v79, s88, {i}", "valu", w=["v79"], r=["s88"])
    def dbgt(word, neg=False):
        if not DBGT: return
        a.emit("s_memrealtime s[88:89]", "salu")
        a.wait_lgkm()
        if neg:
            a.s("s_sub_u32", "s88", "0", "s88")
        a.v("v_mov_b32", "v78", str(word*4))
        a.v("v_mov_b32", "v79", "s88")
        a.s("s_mov_b64", "exec", "1")
        a.emit("global_atomic_umax v78, v79, s[26:27] sc1", 'vmem', r=["v78", "v79", "s26", "s27"])
        a.vm_issue()
        a.s("s_mov_b64", "exec", "-1")
    vL, vJ, vG = "v1", "v2", "v3"
    vKV, vWQ, vW1, vW2 = "v4", "v5", "v6", "v7"
    M = [f"v{8+i}" for i in range(4)]
    AS = [12, 16]
    ACC, ACC2 = 20, 24
    Q = 28
    S = 32
    XP = S + 8
    XN2 = 48
    Y2 = 52
    H2 = 56
    B1 = 58
    PA, PB, L1, L2, L3 = "v60", "v61", "v62", "v63", "v64"
    T = 65
    RING = 80
    NR = 40 if NL else 44
    R = NR + NL
    LAND = RING + 4*NR
    vLK = "v57"
    def rslot(n):
        return RING + 4*((n if n < NR else n - NL) % NR)
    def staged(n):
        return NL and NR <= n < NR + NL
    def prev_occ(n):
        return n - R if n < R + NR else n - NR
    sWV, sB, sH = "s3", "s30", "s31"
    SK, SV, SWQ, SW1, SW2, SWO, SX, SB1, SWS = [32 + 4*i for i in range(9)]
    srd = lambda b: f"s[{b}:{b+3}]"
    SOFF = "s68"
    SC, SA = "s[80:81]", "s[82:83]"
    RL = [84, 85, 86, 87]
    L_QP, L_HP, L_OP, L_QB, L_SM, L_FLAG = 0, 2048, 4096, 6144, 7168, 7232
    LDS_BYTES = 8192 + 4*NL*1024

    a.raw(header())
    a.raw(f"; @launch grid=(256,1,1) block=(256,1,1) lds={LDS_BYTES}")
    a.raw('.amdgcn_target "amdgcn-amd-amdhsa--gfx950"')
    a.raw(".text")
    a.raw(f".globl {NAME}_kernel")
    a.raw(".p2align 8")
    a.raw(f".type {NAME}_kernel,@function")
    a.raw(f"{NAME}_kernel:")
    a.s("s_cmp_ge_u32", "s2", "256")
    a.emit("s_cbranch_scc1 L_end", 'branch')
    a.emit("s_load_dwordx16 s[4:19], s[0:1], 0", 'salu')
    a.emit("s_load_dwordx8 s[20:27], s[0:1], 64", 'salu')
    a.emit("s_load_dwordx2 s[28:29], s[0:1], 96", 'salu')
    tW, tRow, tJ16, tOwn, tXo, tXf = [f"v{T+i}" for i in range(6)]
    a.v("v_and_b32", vL, "63", "v0")
    if STAMP:
        a.v("v_mov_b32", "v79", "0")
    a.v("v_lshrrev_b32", tW, "6", "v0")
    a.v("v_and_b32", vJ, "15", "v0")
    a.v("v_bfe_u32", vG, "v0", "4", "2")
    a.readfirst(sWV, tW)
    a.s("s_lshr_b32", sB, "s2", "5")
    if HMAP == 0:
        a.s("s_and_b32", sH, "s2", "31")
    elif HMAP == 2:
        a.s("s_and_b32", "s69", "s2", "7")
        a.s("s_lshl_b32", "s69", "s69", "1")
        a.s("s_bfe_u32", "s70", "s2", "0x10003")
        a.s("s_or_b32", "s69", "s69", "s70")
        a.s("s_and_b32", "s70", "s2", "16")
        a.s("s_or_b32", sH, "s69", "s70")
    else:
        a.s("s_and_b32", "s69", "s2", "7")
        a.s("s_lshl_b32", "s69", "s69", "2")
        a.s("s_bfe_u32", "s70", "s2", "0x20003")
        a.s("s_add_u32", sH, "s69", "s70")
    a.s("s_lshl_b32", "s90", sB, "5")
    a.s("s_add_u32", "s90", "s90", sH)
    a.v("v_lshlrev_b32", vKV, "4", vL)
    a.v("v_lshl_add_u32", vKV, tW, "12", vKV)
    a.v("v_lshl_add_u32", tRow, tW, "8", vG)
    a.v("v_lshlrev_b32", tJ16, "4", vJ)
    a.s("s_lshl_b32", "s69", sH, "8")
    a.v("v_lshl_add_u32", vWQ, tRow, "13", tJ16)
    a.v("v_add_u32", vWQ, "s69", vWQ)
    a.s("s_mul_i32", "s70", sH, "224")
    a.s("s_movk_i32", "s71", "7168")
    a.v("v_mad_u32_u24", vW1, tRow, "s71", tJ16)
    a.v("v_add_u32", vW1, "s70", vW1)
    a.v("v_cmp_gt_u32", "vcc", "14", vJ)
    a.v("v_mov_b32", tOwn, "0x40000000")
    a.v("v_cndmask_b32", vW1, tOwn, vW1, "vcc")
    a.v("v_lshl_add_u32", vW2, vG, "11", tJ16)
    a.v("v_lshl_add_u32", vW2, tW, "9", vW2)
    a.v("v_lshl_add_u32", tOwn, vJ, "2", vG)
    a.v("v_lshlrev_b32", tOwn, "1", tOwn)
    a.v("v_lshl_add_u32", tXo, tW, "9", tOwn)
    a.v("v_lshlrev_b32", tXf, "5", vL)
    a.wait_lgkm()
    stamp()
    dbgt(8, neg=True)
    def mksrd(b, plo, off, nrec):
        if off is None:
            a.s("s_mov_b32", f"s{b}", f"s{plo}")
            a.s("s_mov_b32", f"s{b+1}", f"s{plo+1}")
        else:
            a.s("s_add_u32", f"s{b}", f"s{plo}", off)
            a.s("s_addc_u32", f"s{b+1}", f"s{plo+1}", "0")
        a.s("s_mov_b32", f"s{b+2}", str(nrec))
        a.s("s_mov_b32", f"s{b+3}", "0x00020000")
    a.s("s_lshl_b32", "s72", sB, "11")
    mksrd(SX, 4, "s72", 2048)
    a.bload("buffer_load_dwordx4", rng(XP, 4), tXf, srd(SX), "0")
    a.bload("buffer_load_dwordx4", rng(XP+4, 4), tXf, srd(SX), "0", off=16)
    if ROT is None:
        for i in range(4):
            id_xo = a.bload("buffer_load_ushort", f"v{XN2+i}", tXo, srd(SX), "0", off=128*i)
    else:
        a.s("s_and_b32", "s91", sH, "3")
        a.s("s_mul_i32", "s91", "s91", str(ROT[0]))
        a.s("s_lshr_b32", "s92", sH, "2")
        a.s("s_mul_i32", "s92", "s92", str(ROT[1]))
        a.s("s_add_u32", "s91", "s91", "s92")
        a.s("s_and_b32", "s91", "s91", "63")
        a.s("s_lshl_b32", "s92", sWV, "9")
        for i in range(4):
            tx = f"v{Y2+i}"
            a.v("v_add_u32", tx, "s91", vJ)
            a.v("v_add_u32", tx, str(16*i), tx)
            a.v("v_and_b32", tx, "63", tx)
            a.v("v_lshlrev_b32", tx, "3", tx)
            a.v("v_lshl_add_u32", tx, vG, "1", tx)
            id_xo = a.bload("buffer_load_ushort", f"v{XN2+i}", tx, srd(SX), "s92")
    mksrd(SWQ, 10, None, 8388608)
    a.v("v_lshlrev_b32", tXf, "4", vL)
    if 'wq' in PF:
        a.s("s_lshl_b32", "s72", "s2", "15")
        a.s("s_lshl_b32", "s73", sWV, "13")
        a.s("s_add_u32", "s72", "s72", "s73")
        for i in range(8):
            if i == 4: a.s("s_add_u32", "s72", "s72", "4096")
            a.bload("buffer_load_dwordx4", rng(192 + 4*i, 4, 'a'), tXf, srd(SWQ), "s72", off=(i & 3)*1024)
    a.s("s_lshl_b32", "s72", "s90", "20")
    mksrd(SK, 6, "s72", 1048576)
    mksrd(SV, 8, "s72", 1048576)

    a.s("s_mul_i32", "s93", sWV, str(NL*1024))
    a.s("s_add_u32", "s93", "s93", "8192")
    a.v("v_add_u32", vLK, "s93", tXf)
    ids = {}
    def issue_stream(n):
        if n >= 512 or n in ids: return
        sr = SK if n < 256 else SV
        m = n % 256
        c, t = m >> 2, m & 3
        a.s("s_mov_b32", SOFF, str(c*16384))
        if staged(n):
            a.emit(f"s_add_u32 m0, s93, {((n - NR) >> 2)*4096}", 'salu')
            a.nop(1)
            a.emit(f"buffer_load_dwordx4 {vKV}, {srd(sr)}, {SOFF} offen offset:{t*1024} {POL_KV} lds", 'vmem', r=[vKV, SOFF])
            ids[n] = a.vm_issue()
            return
        r = rslot(n)
        ids[n] = a.bload("buffer_load_dwordx4", rng(r, 4), vKV, srd(sr), SOFF, off=t*1024, pol=POL_KV)
    id_wq = {}
    def issue_wq(u):
        if 'wq' in FAKE:
            a.s("s_lshl_b32", SOFF, sH, "18")
            a.s("s_add_u32", SOFF, SOFF, str((u >> 2)*16384 + (u & 3)*1024))
            id_wq[u] = a.bload("buffer_load_dwordx4", rng(4*u, 4, 'a'), vKV, srd(SWQ), SOFF, pol=POL_W)
            return
        if ROT is not None:
            a.s("s_add_u32", SOFF, "s91", str(u))
            a.s("s_and_b32", SOFF, SOFF, "63")
            a.s("s_lshl_b32", SOFF, SOFF, "15")
        else:
            a.s("s_mov_b32", SOFF, str(u*32768) if 'wq' not in SKIP else "0x40000000")
        id_wq[u] = a.bload("buffer_load_dwordx4", rng(4*u, 4, 'a'), vWQ, srd(SWQ), SOFF, pol=POL_W)
    seqA = []
    kk = 0
    for u in range(64):
        seqA.append(('wq', u))
        if (u + 1) % RATIO == 0:
            seqA.append(('k', kk)); kk += 1
    while kk < R:
        seqA.append(('k', kk)); kk += 1
    pA = [0]
    def issue_A(upto):
        while pA[0] < min(upto, len(seqA)):
            k, i = seqA[pA[0]]; pA[0] += 1
            if k == 'wq': issue_wq(i)
            else: issue_stream(i)
    issue_A(W0)
    mksrd(SW1, 16, None, 7340032)
    if 'w1' in PF:
        a.s("s_mul_i32", "s72", "s2", "28672")
        a.s("s_mul_i32", "s73", sWV, "7168")
        a.s("s_add_u32", "s72", "s72", "s73")
        for i in range(7):
            if i == 4: a.s("s_add_u32", "s72", "s72", "4096")
            a.bload("buffer_load_dwordx4", rng(224 + 4*i, 4, 'a'), tXf, srd(SW1), "s72", off=(i & 3)*1024)
    a.s("s_mul_i32", "s72", sH, "229376")
    mksrd(SW2, 20, "s72", 229376)
    a.s("s_lshl_b32", "s72", sH, "18")
    mksrd(SWO, 12, "s72", 262144)
    mksrd(SB1, 18, "s70", 224)
    mksrd(SWS, 28, None, 2097152)
    a.bload("buffer_load_ushort", f"v{B1}", tOwn, srd(SB1), "0")
    id_b1 = a.bload("buffer_load_ushort", f"v{B1+1}", tOwn, srd(SB1), "0", off=128)
    t0, t1, t2, t3 = [f"v{T+6+i}" for i in range(4)]
    vSUM, vMB, vSD, vRI = [f"v{T+10+i}" for i in range(4)]
    a.v("v_and_b32", t0, "1", vJ)
    a.v("v_lshlrev_b32", t0, "4", t0)
    a.v("v_mov_b32", t1, "0xffff")
    a.v("v_lshlrev_b32", t1, t0, t1)
    a.v("v_lshrrev_b32", t2, "1", vJ)
    for w in range(4):
        a.v("v_cmp_eq_u32", "vcc", str(w), t2)
        a.v("v_cndmask_b32", M[w], "0", t1, "vcc")
    a.s("s_mov_b32", "s80", "0xcccccccc"); a.s("s_mov_b32", "s81", "0xcccccccc")
    a.s("s_mov_b32", "s82", "0xaaaaaaaa"); a.s("s_mov_b32", "s83", "0xaaaaaaaa")

    def allreduce(op, r):
        for n in (8, 4, 2, 1):
            a.dpp(op, r, r, r, ctrl=f"row_ror:{n}")
        for i in range(4):
            a.readlane(f"s{RL[i]}", r, str(16*i))
        a.v("v_mov_b32", r, f"s{RL[0]}")
        for i in range(1, 4):
            a.v(op, r, f"s{RL[i]}", r)
    def bfr(dst, src):
        a.v("v_cvt_pk_bf16_f32", dst, "0", src)
    def ln_stats():
        a.v("v_mov_b32", vSUM, "0")
        a.v("v_mov_b32", t2, "0")
        for i in range(8):
            a.v("v_lshlrev_b32", t0, "16", f"v{XP+i}")
            a.v("v_and_b32", t1, "0xffff0000", f"v{XP+i}")
            a.v("v_add_f32", vSUM, vSUM, t0)
            a.v("v_add_f32", t2, t2, t1)
        a.v("v_add_f32", vSUM, vSUM, t2)
        allreduce("v_add_f32", vSUM)
        a.v("v_mul_f32", vMB, f2u(1.0/1024), vSUM)
        a.v("v_mov_b32", vSUM, "0")
        a.v("v_mov_b32", t2, "0")
        for i in range(8):
            a.v("v_lshlrev_b32", t0, "16", f"v{XP+i}")
            a.v("v_and_b32", t1, "0xffff0000", f"v{XP+i}")
            a.v("v_sub_f32", t0, t0, vMB)
            a.v("v_sub_f32", t1, t1, vMB)
            a.v("v_fmac_f32", vSUM, t0, t0, rmw=True)
            a.v("v_fmac_f32", t2, t1, t1, rmw=True)
        a.v("v_add_f32", vSUM, vSUM, t2)
        allreduce("v_add_f32", vSUM)
        a.v("v_mul_f32", vSUM, f2u(1.0/1024), vSUM)
        bfr(vMB, vMB)
        bfr(vSUM, vSUM)
        a.v("v_add_f32", vSUM, f2u(1e-5), vSUM)
        bfr(vSUM, vSUM)
        a.trans("v_sqrt_f32", vSD, vSUM)
        bfr(vSD, vSD)
        a.trans("v_rcp_f32", vRI, vSD)
    def ln_apply(x, tmp):
        a.v("v_sub_f32", x, x, vMB)
        bfr(x, x)
        a.v("v_mul_f32", tmp, x, vRI)
        a.v("v_fma_f32", x, f"-{tmp}", vSD, x)
        a.v("v_fma_f32", x, x, vRI, tmp)

    a.wait_vm(id_xo)
    stamp()
    ln_stats()
    for i in range(4):
        a.v("v_lshlrev_b32", f"v{XN2+i}", "16", f"v{XN2+i}")
        ln_apply(f"v{XN2+i}", t0)
        a.v("v_cvt_pk_bf16_f32", f"v{XN2+i}", f"v{XN2+i}", f"v{XN2+i}")
    def ln1_full():
        for i in range(8):
            a.v("v_lshlrev_b32", t0, "16", f"v{XP+i}")
            a.v("v_and_b32", t1, "0xffff0000", f"v{XP+i}")
            ln_apply(t0, t2)
            ln_apply(t1, t3)
            a.v("v_cvt_pk_bf16_f32", f"v{XP+i}", t0, t1)
    def ln2():
        ln1_full()
        ln_stats()
        for i in range(4):
            a.v("v_and_b32", f"v{Y2+i}", "0xffff0000", f"v{XN2+i}")
            ln_apply(f"v{Y2+i}", t0)
            a.v("v_cvt_pk_bf16_f32", f"v{Y2+i}", f"v{Y2+i}", f"v{Y2+i}")
    stamp()

    cnt = [0]
    def mk_a(src2, lane):
        As = AS[cnt[0] & 1]; cnt[0] += 1
        for w in range(4):
            a.dpp("v_and_b32", f"v{As+w}", src2, M[w], ctrl=f"row_newbcast:{lane}")
        return rng(As, 4)
    def diag_mfma(src2, lane, btile, first, acc=ACC):
        A_ = mk_a(src2, lane)
        a.mfma(rng(acc, 4), A_, btile, "0" if first else rng(acc, 4))
    def lo32(on):
        a.emit(f"s_mov_b32 exec_hi, {0 if on else -1}", 'salu', w=['exec'])
    def write_partial(lbase, acc=ACC):
        ad = f"v{T}"
        a.v("v_and_b32", ad, "1", vG)
        a.v("v_lshlrev_b32", ad, "6", ad)
        a.v("v_lshl_add_u32", ad, vJ, "7", ad)
        a.s("s_lshl_b32", "s72", sWV, "2")
        a.v("v_add_u32", ad, "s72", ad)
        lo32(True)
        for r in range(4):
            a.dsw("ds_write_b32", ad, f"v{acc+r}", off=lbase + r*16)
        lo32(False)
    def sum4(dst, base):
        a.v("v_add_f32", f"v{base}", f"v{base}", f"v{base+1}")
        a.v("v_add_f32", f"v{base+2}", f"v{base+2}", f"v{base+3}")
        a.v("v_add_f32", dst, f"v{base}", f"v{base+2}")

    for u in range(64):
        a.wait_vm(id_wq[u])
        pos = seqA.index(('wq', u))
        diag_mfma(f"v{XN2 + (u >> 4)}", u & 15, rng(4*u, 4, 'a'), u == 0)
        issue_A(pos + 1 + W0)
    write_partial(L_QP)
    a.wait_lgkm()
    stamp()
    a.emit("s_barrier", 'salu')
    ad = f"v{T}"
    a.v("v_lshlrev_b32", ad, "5", vL)
    a.dsr("ds_read_b128", rng(12, 4), ad, off=L_QP)
    a.dsr("ds_read_b128", rng(16, 4), ad, off=L_QP + 16)
    issue_A(len(seqA))
    a.wait_lgkm()
    sum4(f"v{T+1}", 12)
    sum4(f"v{T+2}", 16)
    a.v("v_cvt_pk_bf16_f32", f"v{T+1}", f"v{T+1}", f"v{T+2}")
    a.s("s_lshl_b32", "s72", sWV, "8")
    a.v("v_lshlrev_b32", ad, "2", vL)
    a.v("v_add_u32", ad, "s72", ad)
    a.dsw("ds_write_b32", ad, f"v{T+1}", off=L_QB)
    a.v("v_lshlrev_b32", ad, "4", vJ)
    a.v("v_add_u32", ad, "s72", ad)
    a.wait_lgkm()
    a.dsr("ds_read_b128", rng(Q, 4), ad, off=L_QB)
    a.wait_lgkm()
    stamp()
    dbgt(9)

    nxt = [R]
    def stream_to(target, consumed):
        while nxt[0] < min(target, 512) and prev_occ(nxt[0]) < consumed:
            issue_stream(nxt[0]); nxt[0] += 1
    id_w1, id_w2, id_wo = {}, {}, {}
    def Wn(n):
        for p in (W1_START, NH, 255):
            if p - BOOST - 2 <= n <= p:
                return W + min(BOOST, n - (p - BOOST - 2))
        return W
    W1I = lambda u: W1_START + XS*u
    W1Cn = lambda u: W1I(u) + LAG
    NH = W1Cn(63) + 2
    W2I = lambda v: W1I(64) + 2*XS*v
    W2C = lambda v: max(W2I(v) + LAG, NH + 1 + v)
    NM = W2C(27) + 2
    WOI = lambda u: W2I(28) + 2*XS*u
    assert WOI(31) < 500
    ACCO = Q
    ah = f"v{T+1}"
    def h_exchange():
        write_partial(L_HP, ACC2)
        a.wait_lgkm()
        a.emit("s_barrier", 'salu')
        a.v("v_lshl_add_u32", ah, vJ, "2", vG)
        a.v("v_lshlrev_b32", ah, "4", ah)
        for grp in range(2):
            a.dsr("ds_read_b128", rng(12 + 4*grp, 4), ah, off=L_HP + grp*1024)
        a.wait_lgkm()
        a.wait_vm(id_b1)
        tt, u_ = t0, t1
        for grp in range(2):
            hx = f"v{H2+grp}"
            sum4(hx, 12 + 4*grp)
            bfr(hx, hx)
            a.v("v_lshlrev_b32", tt, "16", f"v{B1+grp}")
            a.v("v_add_f32", hx, hx, tt)
            bfr(hx, hx)
            a.v("v_mul_f32", u_, hx, hx)
            a.v("v_mul_f32", u_, u_, hx)
            a.v("v_mul_f32", u_, f2u(0.044715), u_)
            a.v("v_add_f32", u_, u_, hx)
            a.v("v_mul_f32", u_, f2u(0.7978845608028654), u_)
            a.v("v_mul_f32", u_, f2u(2*1.4426950408889634), u_)
            a.trans("v_exp_f32", u_, u_)
            a.v("v_add_f32", u_, "1.0", u_)
            a.trans("v_rcp_f32", u_, u_)
            a.v("v_fma_f32", u_, u_, "-2.0", "2.0")
            a.v("v_mul_f32", tt, "0.5", hx)
            a.v("v_mul_f32", hx, tt, u_)
            a.v("v_cvt_pk_bf16_f32", hx, hx, hx)
    vST = f"v{T+2}"
    def mlp_store():
        a.v("v_and_b32", vST, "1", vG)
        a.v("v_lshlrev_b32", vST, "4", vST)
        a.v("v_lshl_add_u32", vST, vJ, "5", vST)
        a.s("s_lshl_b32", "s72", sWV, "10")
        a.v("v_add_u32", vST, "s72", vST)
        a.s("s_lshl_b32", "s73", "s90", "12")
        a.s("s_add_u32", "s74", "s73", "0x100000")
        lo32(True)
        a.bstore("buffer_store_dwordx4", rng(ACC, 4), vST, srd(SWS), "s74", pol="sc1")
        a.bstore("buffer_store_dwordx4", rng(ACC2, 4), vST, srd(SWS), "s74", off=512, pol="sc1")
        lo32(False)
    def extras(n):
        if n == W1_START:
            ln2()
        for u in range(64):
            if n == W1I(u):
                if ROT is not None:
                    a.s("s_add_u32", SOFF, "s91", str(u))
                    a.s("s_and_b32", SOFF, SOFF, "63")
                    a.s("s_mul_i32", SOFF, SOFF, "28672")
                else:
                    a.s("s_mov_b32", SOFF, str(u*28672) if 'w1' not in SKIP else "0x20000000")
                id_w1[u] = a.bload("buffer_load_dwordx4", rng(4*u, 4, 'a'), vW1, srd(SW1), SOFF, pol=POL_W)
            if n == W1Cn(u):
                a.wait_vm(id_w1[u])
                diag_mfma(f"v{Y2 + (u >> 4)}", u & 15, rng(4*u, 4, 'a'), u == 0, acc=ACC2)
        if n == NH:
            h_exchange()
        for v in range(28):
            if n == W2I(v):
                assert W1Cn(2*v + 1) < n
                a.s("s_mov_b32", SOFF, str(v*8192) if 'w2' not in SKIP else "0x40000000")
                id_w2[2*v] = a.bload("buffer_load_dwordx4", rng(8*v, 4, 'a'), vW2, srd(SW2), SOFF, pol=POL_W)
                id_w2[2*v+1] = a.bload("buffer_load_dwordx4", rng(8*v+4, 4, 'a'), vW2, srd(SW2), SOFF, off=256, pol=POL_W)
            if n == W2C(v):
                a.wait_vm(id_w2[2*v+1])
                A_ = mk_a(f"v{H2 + (v >> 4)}", v & 15)
                a.mfma(rng(ACC, 4), A_, rng(8*v, 4, 'a'), "0" if v == 0 else rng(ACC, 4))
                a.mfma(rng(ACC2, 4), A_, rng(8*v+4, 4, 'a'), "0" if v == 0 else rng(ACC2, 4))
        if n == NM:
            mlp_store()
        for u in range(32):
            if n == WOI(u):
                assert (u >= 28 and W1Cn(2*u+1) < n) or (u < 28 and W2C(u) < n)
                a.s("s_mov_b32", SOFF, str(u*8192) if 'wo' not in SKIP else "0x40000000")
                id_wo[2*u] = a.bload("buffer_load_dwordx4", rng(8*u, 4, 'a'), vW2, srd(SWO), SOFF, pol=POL_W)
                id_wo[2*u+1] = a.bload("buffer_load_dwordx4", rng(8*u+4, 4, 'a'), vW2, srd(SWO), SOFF, off=256, pol=POL_W)
    for n in range(256):
        G, t = n >> 4, n & 15
        if staged(n + 2):
            a.wait_vm(ids[n + 2])
            a.dsr("ds_read_b128", rng(LAND + 4*((n + 2) % 4), 4), vLK, off=(n + 2 - NR)*1024)
        if staged(n):
            pend = int(bool(staged(n + 1))) + int(bool(staged(n + 2)))
            a.emit(f"s_waitcnt lgkmcnt({pend})", 'salu')
            r = LAND + 4*(n % 4)
        else:
            a.wait_vm(ids[n])
            r = rslot(n)
        P = PA if (t & 1) == 0 else PB
        for i in range(4):
            a.dot(P, f"v{r+i}", f"v{Q+i}", "0" if i == 0 else P)
        stream_to(max(n + 1 + Wn(n), R + (n + 1)//CATCH), n + 1)
        if t & 1:
            dst1 = L1 if (t & 2) == 0 else PA
            a.dpp("v_add_f32", dst1, PA, PA, ctrl="row_ror:8", bank=0x3)
            a.dpp("v_add_f32", dst1, PB, PB, ctrl="row_ror:8", bank=0xc)
            if t & 2:
                dst2 = L2 if (t & 4) == 0 else L1
                a.dpp("v_add_f32", dst2, L1, L1, ctrl="row_ror:12", bank=0x5)
                a.dpp("v_add_f32", dst2, PA, PA, ctrl="row_ror:4", bank=0xa)
                if t & 4:
                    dst3 = L3 if (t & 8) == 0 else L2
                    a.dpp("v_add_f32", PA, L2, L2, ctrl="quad_perm:[2,3,0,1]")
                    a.dpp("v_add_f32", PB, L1, L1, ctrl="quad_perm:[2,3,0,1]")
                    a.v("v_cndmask_b32", dst3, PA, PB, SC)
                    if t & 8:
                        a.dpp("v_add_f32", PA, L3, L3, ctrl="quad_perm:[1,0,3,2]")
                        a.dpp("v_add_f32", PB, L2, L2, ctrl="quad_perm:[1,0,3,2]")
                        sg = f"v{S+G}"
                        a.v("v_cndmask_b32", sg, PA, PB, SA)
                        bfr(sg, sg)
                        a.v("v_mul_f32", sg, f2u(128 ** -0.5), sg)
                        bfr(sg, sg)
        extras(n)
    assert W1_START < 140, "x packed regs / S overlap"
    stamp()
    dbgt(10)
    vM, vSm = "v12", "v13"
    a.v("v_max3_f32", vM, f"v{S}", f"v{S+1}", f"v{S+2}")
    for i in range(3, 15, 2):
        a.v("v_max3_f32", vM, vM, f"v{S+i}", f"v{S+i+1}")
    a.v("v_max_f32", vM, vM, f"v{S+15}")
    allreduce("v_max_f32", vM)
    LOG2E = f2u(1.4426950408889634)
    a.v("v_mov_b32", vSm, "0")
    for i in range(16):
        tt = t0 if i & 1 else t1
        a.v("v_sub_f32", tt, f"v{S+i}", vM)
        a.v("v_mul_f32", tt, LOG2E, tt)
        a.trans("v_exp_f32", tt, tt)
        a.v("v_add_f32", vSm, vSm, tt)
    allreduce("v_add_f32", vSm)
    ad = f"v{T}"
    a.s("s_lshl_b32", "s72", sWV, "3")
    a.v("v_mov_b32", ad, "s72")
    a.dsw("ds_write_b64", ad, "v[12:13]", off=L_SM)
    a.wait_lgkm()
    a.emit("s_barrier", 'salu')
    a.v("v_mov_b32", ad, "0")
    for i in range(2):
        a.dsr("ds_read_b128", rng(12 + 4*i, 4), ad, off=L_SM + 16*i)
    a.wait_lgkm()
    gM, gT, inv = t2, t3, vSUM
    a.v("v_max3_f32", gM, "v12", "v14", "v16")
    a.v("v_max_f32", gM, gM, "v18")
    a.v("v_mov_b32", gT, "0")
    for w in range(4):
        a.v("v_sub_f32", t0, f"v{12+2*w}", gM)
        a.v("v_mul_f32", t0, LOG2E, t0)
        a.trans("v_exp_f32", t0, t0)
        a.v("v_fmac_f32", gT, t0, f"v{13+2*w}", rmw=True)
    a.trans("v_rcp_f32", inv, gT)
    a.v("v_fma_f32", t0, f"-{gT}", inv, "1.0")
    a.v("v_fma_f32", inv, t0, inv, inv)
    def pcalc(i):
        sg = f"v{S+i}"
        a.v("v_sub_f32", sg, sg, gM)
        a.v("v_mul_f32", sg, LOG2E, sg)
        a.trans("v_exp_f32", sg, sg)
        a.v("v_mul_f32", sg, sg, inv)
        a.v("v_cvt_pk_bf16_f32", sg, sg, sg)
    pcalc(0)
    stamp()

    for m in range(256):
        n = 256 + m
        G, t = m >> 4, m & 15
        a.wait_vm(ids[n])
        r = rslot(n)
        diag_mfma(f"v{S+G}", bitrev4(t), rng(r, 4), m == 0, acc=ACCO)
        stream_to(n + 1 + Wn(n), n + 1)
        if t == 0 and G < 15:
            pcalc(G + 1)
        extras(n)
    stamp()
    dbgt(11)
    write_partial(L_OP, ACCO)
    a.wait_lgkm()
    a.emit("s_barrier", 'salu')
    for grp in range(2):
        a.dsr("ds_read_b128", rng(12 + 4*grp, 4), ah, off=L_OP + grp*1024)
    a.wait_lgkm()
    for grp in range(2):
        ox = f"v{H2+grp}"
        sum4(ox, 12 + 4*grp)
        a.v("v_cvt_pk_bf16_f32", ox, ox, ox)
    for u in range(32):
        a.wait_vm(id_wo[2*u+1])
        A_ = mk_a(f"v{H2 + (u >> 4)}", u & 15)
        a.mfma(rng(ACC, 4), A_, rng(8*u, 4, 'a'), "0" if u == 0 else rng(ACC, 4))
        a.mfma(rng(ACC2, 4), A_, rng(8*u+4, 4, 'a'), "0" if u == 0 else rng(ACC2, 4))
    lo32(True)
    a.bstore("buffer_store_dwordx4", rng(ACC, 4), vST, srd(SWS), "s73", pol="sc1")
    a.bstore("buffer_store_dwordx4", rng(ACC2, 4), vST, srd(SWS), "s73", off=512, pol="sc1")
    lo32(False)
    stamp()
    a.wait_vm_all()
    stamp()
    a.emit("s_barrier", 'salu')
    def dump_stamps():
        if not STAMP: return
        a.s("s_lshl_b32", "s75", "s2", "3")
        a.s("s_add_u32", "s75", "s75", sWV)
        a.s("s_lshl_b32", "s75", "s75", "8")
        a.s("s_add_u32", "s76", "s28", "0x400000")
        a.s("s_addc_u32", "s77", "s29", "0")
        a.v("v_lshlrev_b32", "v78", "2", vL)
        a.v("v_add_u32", "v78", "s75", "v78")
        a.emit("global_store_dword v78, v79, s[76:77]", "vstore", r=["v78", "v79", "s76", "s77"])
        a.emit("s_waitcnt vmcnt(0)", 'salu')
    if STAMP:
        stamp()
        dump_stamps()
    NHLP = HELP
    SPJ = 32 // NHLP
    SPW = SPJ // 4
    vO, vC8 = "v20", "v21"
    a.v("v_lshrrev_b32", "v22", "3", vL)
    a.v("v_and_b32", "v23", "7", vL)
    a.v("v_lshlrev_b32", vO, "4", "v23")
    a.v("v_lshl_add_u32", vO, "v22", "12", vO)
    a.v("v_lshlrev_b32", vC8, "3", "v23")
    mksrd(SB1, 22, None, 2048)
    a.s("s_lshl_b32", "s72", sB, "11")
    mksrd(SW1, 24, "s72", 2048)
    a.s("s_lshl_b32", "s78", sB, "17")
    a.s("s_cmp_lg_u32", sWV, "0")
    a.emit("s_cbranch_scc1 L_join", 'branch')
    a.s("s_lshl_b32", "s72", sB, "2")
    a.v("v_mov_b32", "v12", "s72")
    a.v("v_mov_b32", "v16", "1")
    a.s("s_mov_b64", "exec", "1")
    a.emit("global_atomic_add v14, v12, v16, s[26:27] sc0 sc1", 'vmem', w=["v14"], r=["v12", "v16", "s26", "s27"])
    a.emit("s_waitcnt vmcnt(0)", 'salu')
    a.readfirst("s72", "v14")
    a.s("s_mov_b32", "s79", "0")
    a.s("s_and_b32", "s74", "s72", "63")
    a.s("s_cmp_lt_u32", "s74", str(32 - NHLP))
    a.emit("s_cbranch_scc1 L_publish", 'branch')
    a.s("s_cmp_gt_u32", "s74", "31")
    a.emit("s_cbranch_scc1 L_publish", 'branch')
    a.s("s_sub_u32", "s77", "s74", str(32 - NHLP))
    a.s("s_lshl_b32", "s79", "1", "s77")
    a.s("s_cmp_eq_u32", "s74", "31")
    a.emit("s_cbranch_scc0 L_wait", 'branch')
    a.s("s_lshr_b32", "s72", "s72", "8")
    a.s("s_or_b32", "s79", "s79", "s72")
    a.emit("s_branch L_publish", 'branch')
    a.label("L_wait")
    a.s("s_movk_i32", "s75", "48")
    a.raw("L_poll:")
    a.emit(f"s_sleep {SLEEP}", 'salu')
    a.emit("global_load_dword v14, v12, s[26:27] sc1", 'vmem', w=["v14"], r=["v12", "s26", "s27"])
    a.emit("s_waitcnt vmcnt(0)", 'salu')
    a.readfirst("s72", "v14")
    a.s("s_and_b32", "s72", "s72", "63")
    a.s("s_cmp_eq_u32", "s72", "32")
    a.emit("s_cbranch_scc1 L_publish", 'branch')
    a.s("s_sub_u32", "s75", "s75", "1")
    a.s("s_cmp_lg_u32", "s75", "0")
    a.emit("s_cbranch_scc1 L_poll", 'branch')
    a.s("s_lshl_b32", "s72", "s79", "8")
    a.v("v_mov_b32", "v16", "s72")
    a.emit("global_atomic_or v14, v12, v16, s[26:27] sc0 sc1", 'vmem', w=["v14"], r=["v12", "v16", "s26", "s27"])
    a.emit("s_waitcnt vmcnt(0)", 'salu')
    a.readfirst("s72", "v14")
    a.s("s_and_b32", "s72", "s72", "63")
    a.s("s_cmp_eq_u32", "s72", "32")
    a.s("s_cselect_b32", "s79", "s79", "0")
    a.label("L_publish")
    a.v("v_mov_b32", "v12", "0")
    a.v("v_mov_b32", "v14", "s79")
    a.dsw("ds_write_b32", "v12", "v14", off=L_FLAG)
    a.wait_lgkm()
    a.s("s_mov_b64", "exec", "-1")
    a.label("L_join")
    a.emit("s_barrier", 'salu')
    a.v("v_mov_b32", "v12", "0")
    a.dsr("ds_read_b32", "v13", "v12", off=L_FLAG)
    a.wait_lgkm()
    a.readfirst("s79", "v13")
    a.s("s_cmp_eq_u32", "s79", "0")
    a.emit("s_cbranch_scc1 L_end", 'branch')
    a.label("L_jobs")
    a.s("s_mov_b64", "exec", "-1")
    a.s("s_ff1_i32_b32", "s74", "s79")
    a.s("s_bitset0_b32", "s79", "s74")
    a.s("s_mul_i32", "s74", "s74", str(SPJ))
    a.s("s_mul_i32", "s75", sWV, str(SPW))
    a.s("s_add_u32", "s74", "s74", "s75")
    a.s("s_lshl_b32", "s75", "s74", "7")
    a.s("s_add_u32", "s75", "s75", "s78")
    a.s("s_lshl_b32", "s76", "s74", "6")
    fid = {}
    for q_ in range(SPW):
        for i in range(8):
            a.s("s_add_u32", SOFF, "s75", str((i >> 1)*32768 + (i & 1)*0x100000 + q_*128))
            fid[(q_, i)] = a.bload("buffer_load_dwordx4", rng(RING + 32*q_ + 4*i, 4), vO, srd(SWS), SOFF, pol="sc1")
    for q_ in range(SPW):
        a.bload("buffer_load_dwordx2", rng(32 + 4*q_, 2), vC8, srd(SX), "s76", off=64*q_)
        fid[(q_, 'b')] = a.bload("buffer_load_dwordx2", rng(34 + 4*q_, 2), vC8, srd(SB1), "s76", off=64*q_)
    for q_ in range(SPW):
        RB = RING + 32*q_
        for i in range(2, 8):
            a.wait_vm(fid[(q_, i)])
            for r in range(4):
                d = f"v{RB + 4*(i & 1) + r}"
                a.v("v_add_f32", d, d, f"v{RB + 4*i + r}")
        for k in range(8):
            d = f"v{RB + k}"
            a.dpp("v_add_f32", d, d, d, ctrl="row_ror:8")
        for opc in ("v_permlane16_swap_b32", "v_permlane32_swap_b32"):
            for k in range(8):
                a.v("v_mov_b32", f"v{RB + 8 + k}", f"v{RB + k}")
            for k in range(8):
                d, t_ = f"v{RB + k}", f"v{RB + 8 + k}"
                a.emit(f"{opc} {d}, {t_}", 'permlane', w=[d, t_], r=[d, t_])
            for k in range(8):
                d, t_ = f"v{RB + k}", f"v{RB + 8 + k}"
                a.v("v_add_f32", d, d, t_)
    for q_ in range(SPW):
        RB = RING + 32*q_
        a.wait_vm(fid[(q_, 'b')])
        for r in range(4):
            xs = f"v{32 + 4*q_ + (r >> 1)}"; bs = f"v{34 + 4*q_ + (r >> 1)}"
            if r & 1:
                a.v("v_and_b32", "v28", "0xffff0000", xs)
                a.v("v_and_b32", "v29", "0xffff0000", bs)
            else:
                a.v("v_lshlrev_b32", "v28", "16", xs)
                a.v("v_lshlrev_b32", "v29", "16", bs)
            A_, M_ = f"v{RB+r}", f"v{RB+4+r}"
            bfr(A_, A_)
            bfr(M_, M_)
            a.v("v_add_f32", M_, M_, "v29")
            bfr(M_, M_)
            a.v("v_add_f32", A_, "v28", A_)
            bfr(A_, A_)
            a.v("v_add_f32", A_, A_, M_)
        a.v("v_cvt_pk_bf16_f32", f"v{RB+8}", f"v{RB}", f"v{RB+1}")
        a.v("v_cvt_pk_bf16_f32", f"v{RB+9}", f"v{RB+2}", f"v{RB+3}")
    a.s("s_mov_b64", "exec", "0xff")
    for q_ in range(SPW):
        RB = RING + 32*q_
        a.bstore("buffer_store_dwordx2", rng(RB+8, 2), vC8, srd(SW1), "s76", off=64*q_)
    a.s("s_cmp_eq_u32", "s79", "0")
    a.emit("s_cbranch_scc1 L_fin", 'branch')
    a.wait_vm_all()
    a.emit("s_branch L_jobs", 'branch')
    a.label("L_fin")
    if STAMP:
        a.s("s_mov_b64", "exec", "-1")
        a.emit("s_waitcnt vmcnt(0)", 'salu')
        stamp()
        dump_stamps()
    a.raw("L_end:")
    a.raw("    s_endpgm")
    a.raw('.section .rodata,"a"')
    a.raw(".p2align 6")
    a.raw(f".amdhsa_kernel {NAME}_kernel")
    a.raw("  .amdhsa_next_free_vgpr 512")
    a.raw("  .amdhsa_next_free_sgpr 96")
    a.raw("  .amdhsa_accum_offset 256")
    a.raw("  .amdhsa_group_segment_fixed_size 0")
    a.raw("  .amdhsa_kernarg_size 104")
    a.raw("  .amdhsa_user_sgpr_count 2")
    a.raw("  .amdhsa_user_sgpr_kernarg_segment_ptr 1")
    a.raw("  .amdhsa_system_sgpr_workgroup_id_x 1")
    a.raw(".end_amdhsa_kernel")
    return a.text()

if __name__ == "__main__":
    out = sys.argv[1] if len(sys.argv) > 1 else f"cdna_kernels/{NAME}.s"
    open(out, "w").write(gen())
    print("wrote", out)
```

```python
import sys
from gen6 import gen
B = dict(W=5, LAG=9, BOOST=6)
V = {
 "g6_r1": dict(B, RATIO=1, W0=12, W1_START=80),
 "g6_nl0": dict(B, NL=0),
 "g6_r1_w6": dict(W=6, LAG=10, BOOST=6, RATIO=1, W0=12, W1_START=80),
 "g6_r1_w16": dict(RATIO=1, W0=12, W1_START=80),
 "g6_r1_h8": dict(B, RATIO=1, W0=12, W1_START=80, HELP=8),
}
for name, kw in V.items():
    open(f"exp/{name}.s", "w").write(gen(**kw))
print(", ".join(f'"exp/{n}.s"' for n in V))
```

```python
import sys
from gen6 import gen
B = dict(W=5, LAG=9, BOOST=6, RATIO=1, W0=12, W1_START=80)
V = {
 "f_base": dict(B),
 "f_s3": dict(B, SLEEP=3),
 "f_w016": dict(B, W0=16),
 "f_c4": dict(B, CATCH=4),
 "f_w1s": dict(B, W1_START=90, LAG=11),
 "f_b10": dict(B, BOOST=10),
}
for name, kw in V.items():
    open(f"exp/{name}.s", "w").write(gen(**kw))
print(", ".join(f'"exp/{n}.s"' for n in V))
```

```python
import sys
from gen6 import gen
B = dict(W=5, LAG=9, BOOST=6, RATIO=1, W0=12, W1_START=80)
V = {
 "f_w08": dict(B, W0=8),
 "f_base": dict(B),
 "f_w010": dict(B, W0=10),
 "f_base2": dict(B),
 "f_w06": dict(B, W0=6),
 "f_w010b": dict(B, W0=10),
}
for name, kw in V.items():
    open(f"exp/{name}.s", "w").write(gen(**kw))
print(", ".join(f'"exp/{n}.s"' for n in V))
```
